```python
import torch

def _softmax(x, axis=-1):
    return torch.softmax(x, dim=axis)
def _gelu(x):
    return torch.nn.functional.gelu(x, approximate="tanh")
def _silu(x):
    return torch.nn.functional.silu(x)
def _sigmoid(x):
    return torch.sigmoid(x)
def _layernorm(x, axis=-1, eps=1e-5):
    m = x.mean(dim=axis, keepdim=True)
    v = x.var(dim=axis, keepdim=True, unbiased=False)
    return (x - m) / torch.sqrt(v + eps)
def _scatter_add(tgt, idx, src, axis=0):
    return tgt.clone().index_add_(axis, idx, src)
def _segment_sum(src, seg, n):
    out = torch.zeros((n,) + src.shape[1:], dtype=src.dtype)
    return out.index_add_(0, seg, src)
def _pad(x, pw):
    flat = tuple(v for pair in reversed(pw) for v in pair)
    return torch.nn.functional.pad(x, flat)

kernel_name = 'standalone__mha_softmax__near_ridge'

def setup_inputs():

    _w = (lambda a: (lambda t: t.to(torch.bfloat16) if t.is_floating_point() else t)(torch.as_tensor(a)))
    B, H, Sq, Sk, D = 8, 32, 576, 1024, 128
    return {
        "q": _w((lambda *s: torch.randn(*s, dtype=torch.bfloat16) * 0.8)(B, H, Sq, D)),
        "k": _w((lambda *s: torch.randn(*s, dtype=torch.bfloat16) * 0.8)(B, H, Sk, D)),
        "v": _w((lambda *s: torch.randn(*s, dtype=torch.bfloat16) * 0.05)(B, H, Sk, D)),
    }

def reference(q, k, v):
    scale = q.shape[-1] ** -0.5
    scores = torch.einsum("bhqd,bhkd->bhqk", q, k) * scale
    p = _softmax(scores, axis=-1)
    return torch.einsum("bhqk,bhkd->bhqd", p, v)
```

```python
import struct
KNAME = "standalone__mha_softmax__near_ridge_kernel"

def f32bits(x):
    return struct.unpack("<I", struct.pack("<f", x))[0]

C_SCALE = 1.4426950408889634 * (128 ** -0.5)

S_W      = 4
SRD_Q    = 8
SRD_K    = 12
SRD_V    = 16
SRD_O    = 20
S_C      = 24
S_QROW   = 25
S_G      = 26
S_XA     = 27
S_XB     = 28
S_DK     = 29
S_IT     = 30
S_FAIL   = 32
S_T0     = 34
S_LO     = 48
S_HI     = 49
S_MASK   = 50
S_J      = 51
S_T      = 52
S_PRIV   = 53

CH   = 1056
HALF = 4*CH
TILE = 8*CH
KRING = 0
VRING = 4*TILE
QREG  = 8*TILE
QW    = 2*TILE
LDS_BYTES = QREG + 4*QW
PRIV  = 40960
LDS_TOTAL = 163840

def header(grid=256, block=256, lds=LDS_TOTAL):
    return f"""; Flash-attention forward, bf16, B*H=256 heads, Sq=576, Sk=1024, D=128 (generated)
; @launch grid=({grid},1,1) block=({block},1,1) lds={lds}
.amdgcn_target "amdgcn-amd-amdhsa--gfx950"
.text
.globl {KNAME}
.p2align 8
.type {KNAME},@function
{KNAME}:
"""

def footer(nv=512, acc=256):
    return f"""
.section .rodata,"a"
.p2align 6
.amdhsa_kernel {KNAME}
  .amdhsa_next_free_vgpr {nv}
  .amdhsa_next_free_sgpr 96
  .amdhsa_accum_offset {acc}
  .amdhsa_group_segment_fixed_size 0
  .amdhsa_kernarg_size 48
  .amdhsa_user_sgpr_count 2
  .amdhsa_user_sgpr_kernarg_segment_ptr 1
  .amdhsa_system_sgpr_workgroup_id_x 1
  .amdhsa_float_denorm_mode_32 3
.end_amdhsa_kernel
"""

def setup_scalar():
    return f"""
    s_cmp_ge_u32 s2, 256
    s_cbranch_scc1 L_end
    s_load_dwordx4 s[36:39], s[0:1], 0
    s_load_dwordx4 s[40:43], s[0:1], 16
    v_lshrrev_b32 v1, 6, v0
    v_and_b32 v0, 63, v0
    s_mul_i32 s34, s2, 147456
    v_readfirstlane_b32 s{S_W}, v1
    s_lshl_b32 s35, s2, 18
    s_mov_b32 s{SRD_Q+2}, 147456
    s_mov_b32 s{SRD_Q+3}, 0x00020000
    s_mov_b32 s{SRD_K+2}, 262144
    s_mov_b32 s{SRD_K+3}, 0x00020000
    s_mov_b32 s{SRD_V+2}, 262144
    s_mov_b32 s{SRD_V+3}, 0x00020000
    s_mov_b32 s{SRD_O+2}, 147456
    s_mov_b32 s{SRD_O+3}, 0x00020000
    s_mov_b32 s{S_C}, {f32bits(C_SCALE):#x}
    s_mov_b32 s{S_MASK}, 0xffff0000
    s_mul_i32 s{S_QROW}, s{S_W}, {144*256}
    s_waitcnt lgkmcnt(0)
    s_add_u32 s{SRD_K}, s38, s35
    s_addc_u32 s{SRD_K+1}, s39, 0
    s_and_b32 s{SRD_K+1}, s{SRD_K+1}, 0xffff
    s_add_u32 s{SRD_V}, s40, s35
    s_addc_u32 s{SRD_V+1}, s41, 0
    s_and_b32 s{SRD_V+1}, s{SRD_V+1}, 0xffff
    s_add_u32 s{SRD_Q}, s36, s34
    s_addc_u32 s{SRD_Q+1}, s37, 0
    s_and_b32 s{SRD_Q+1}, s{SRD_Q+1}, 0xffff
    s_add_u32 s{SRD_O}, s42, s34
    s_addc_u32 s{SRD_O+1}, s43, 0
    s_and_b32 s{SRD_O+1}, s{SRD_O+1}, 0xffff
"""

def lane_addr(vK, vV, vD, vG, t0, t1, t2):
    return f"""
    ; vD = (8*(l>>4) + ((l>>3)&1))*256 + (l&7)*16
    v_lshrrev_b32 v{t0}, 4, v0
    v_lshlrev_b32 v{vD}, 11, v{t0}
    v_bfe_u32 v{t1}, v0, 3, 1
    v_lshlrev_b32 v{t1}, 8, v{t1}
    v_add_u32 v{vD}, v{vD}, v{t1}
    v_and_b32 v{t1}, 7, v0
    v_lshlrev_b32 v{t1}, 4, v{t1}
    v_add_u32 v{vD}, v{vD}, v{t1}
    ; vG = (l&15)*256 + (l>>4)*16
    v_and_b32 v{t1}, 15, v0
    v_lshlrev_b32 v{vG}, 8, v{t1}
    v_lshlrev_b32 v{t2}, 4, v{t0}
    v_add_u32 v{vG}, v{vG}, v{t2}
    ; vK = k*1056 + (m*2+e)*128 + g*16 ; i=l&15, k=(i>>1)&3, m=i>>3, e=i&1
    v_bfe_u32 v{t1}, v0, 1, 2
    v_mul_u32_u24 v{vK}, {CH}, v{t1}
    v_bfe_u32 v{t1}, v0, 3, 1
    v_lshlrev_b32 v{t1}, 8, v{t1}
    v_add_u32 v{vK}, v{vK}, v{t1}
    v_and_b32 v{t1}, 1, v0
    v_lshlrev_b32 v{t1}, 7, v{t1}
    v_add_u32 v{vK}, v{vK}, v{t1}
    v_add_u32 v{vK}, v{vK}, v{t2}
    ; vV: i = 4g + r', r'=(l>>2)&3, c=l&3 ; i = l>>2 ; k=(i>>1)&3=(l>>3)&3, m=i>>3=l>>5, e=i&1=(l>>2)&1
    v_bfe_u32 v{t1}, v0, 3, 2
    v_mul_u32_u24 v{vV}, {CH}, v{t1}
    v_lshrrev_b32 v{t1}, 5, v0
    v_lshlrev_b32 v{t1}, 8, v{t1}
    v_add_u32 v{vV}, v{vV}, v{t1}
    v_bfe_u32 v{t1}, v0, 2, 1
    v_lshlrev_b32 v{t1}, 7, v{t1}
    v_add_u32 v{vV}, v{vV}, v{t1}
    v_and_b32 v{t1}, 3, v0
    v_lshlrev_b32 v{t1}, 3, v{t1}
    v_add_u32 v{vV}, v{vV}, v{t1}
"""

def k_off(kb, dc):
    return (dc >> 1) * HALF + kb * 512 + (dc & 1) * 64
def v_off(db, t):
    return (db >> 2) * HALF + t * 512 + (db & 3) * 32

def prescale(reg, t0, t1):
    return [f"v_lshlrev_b32 v{t0}, 16, v{reg}",
            f"v_and_b32 v{t1}, s{S_MASK}, v{reg}",
            f"v_mul_f32 v{t0}, s{S_C}, v{t0}",
            f"v_mul_f32 v{t1}, s{S_C}, v{t1}",
            f"v_cvt_pk_bf16_f32 v{reg}, v{t0}, v{t1}"]
```

```python
from common import *

def emit_fallback(label="L_fb", vK=None, vV=None, vD=None, vG=None):
    L = []
    A = L.append
    rK, rV, rD, rG = 2, 3, 4, 5
    rM, rL, rA, rT0, rT1, rT2 = 6, 7, 8, 9, 10, 11
    S = 12
    P = 20
    KF = 24
    VF = 56
    Q = 88
    O = 104
    E = 136
    A(f"{label}:")
    A("    s_waitcnt vmcnt(0) lgkmcnt(0)")
    A("    v_mbcnt_lo_u32_b32 v0, -1, 0")
    A("    v_mbcnt_hi_u32_b32 v0, -1, v0")
    A(lane_addr(rK, rV, rD, rG, rT0, rT1, rT2))
    A(f"    s_mul_i32 s{S_PRIV}, s{S_W}, {PRIV}")
    A(f"    v_add_u32 v{rK}, s{S_PRIV}, v{rK}")
    A(f"    v_add_u32 v{rV}, s{S_PRIV}, v{rV}")
    A(f"    s_mov_b32 s{S_J}, 0")
    A(f"{label}_j:")
    A(f"    s_lshl_b32 s34, s{S_J}, 12")
    A(f"    s_add_u32 s34, s34, s{S_QROW}")
    for dc in range(4):
        A(f"    buffer_load_dwordx4 v[{Q+4*dc}:{Q+4*dc+3}], v{rG}, s[{SRD_Q}:{SRD_Q+3}], s34 offen offset:{dc*64}")
    A(f"    v_mov_b32 v{rM}, 0xff800000")
    A(f"    v_mov_b32 v{rL}, 0")
    for i in range(32):
        A(f"    v_mov_b32 v{O+i}, 0")
    A("    s_waitcnt vmcnt(0)")
    for r in range(16):
        for x in prescale(Q+r, rT0, rT1): A("    "+x)
    A(f"    s_mov_b32 s{S_T}, 0")
    A(f"{label}_t:")
    A(f"    s_lshl_b32 s35, s{S_T}, 13")
    for (srd, base) in ((SRD_K, 0), (SRD_V, TILE)):
        for hh in range(2):
            for k in range(4):
                A(f"    s_add_u32 m0, s{S_PRIV}, {base + (hh*4+k)*CH}")
                A(f"    s_add_u32 s36, s35, {k*512 + hh*128}")
                A(f"    buffer_load_dwordx4 v{rD}, s[{srd}:{srd+3}], s36 offen lds")
    A("    s_waitcnt vmcnt(0)")
    for kb in range(2):
        for dc in range(4):
            r = KF + (kb*4+dc)*4
            A(f"    ds_read_b128 v[{r}:{r+3}], v{rK} offset:{k_off(kb,dc)}")
    A("    s_waitcnt lgkmcnt(0)")
    for db in range(8):
        for t in range(2):
            r = VF + db*4 + t*2
            A(f"    ds_read_b64_tr_b16 v[{r}:{r+1}], v{rV} offset:{TILE + v_off(db,t)}")
    for kb in range(2):
        for dc in range(4):
            r = KF + (kb*4+dc)*4
            c = "0" if dc == 0 else f"v[{S+kb*4}:{S+kb*4+3}]"
            A(f"    v_mfma_f32_16x16x32_bf16 v[{S+kb*4}:{S+kb*4+3}], v[{r}:{r+3}], v[{Q+4*dc}:{Q+4*dc+3}], {c}")
    A("    s_nop 15")
    A(f"    v_max3_f32 v{rT0}, v{S}, v{S+1}, v{S+2}")
    A(f"    v_max3_f32 v{rT1}, v{S+3}, v{S+4}, v{S+5}")
    A(f"    v_max3_f32 v{rT0}, v{rT0}, v{S+6}, v{S+7}")
    A(f"    v_max3_f32 v{rT0}, v{rT0}, v{rT1}, v{rM}")
    A(f"    v_mov_b32 v{rT1}, v{rT0}")
    A("    s_nop 1")
    A(f"    v_permlane32_swap_b32 v{rT0}, v{rT1}")
    A("    s_nop 1")
    A(f"    v_max_f32 v{rT0}, v{rT0}, v{rT1}")
    A(f"    v_mov_b32 v{rT1}, v{rT0}")
    A("    s_nop 1")
    A(f"    v_permlane16_swap_b32 v{rT0}, v{rT1}")
    A("    s_nop 1")
    A(f"    v_max_f32 v{rT0}, v{rT0}, v{rT1}")
    A(f"    v_sub_f32 v{rA}, v{rM}, v{rT0}")
    A(f"    v_mov_b32 v{rM}, v{rT0}")
    A(f"    v_exp_f32 v{rA}, v{rA}")
    for i in range(8):
        A(f"    v_sub_f32 v{S+i}, v{S+i}, v{rM}")
    for i in range(8):
        A(f"    v_exp_f32 v{S+i}, v{S+i}")
    A(f"    v_mul_f32 v{rL}, v{rL}, v{rA}")
    for i in range(32):
        A(f"    v_mul_f32 v{O+i}, v{O+i}, v{rA}")
    for i in range(8):
        A(f"    v_add_f32 v{rL}, v{rL}, v{S+i}")
    for i in range(4):
        A(f"    v_cvt_pk_bf16_f32 v{P+i}, v{S+2*i}, v{S+2*i+1}")
    A("    s_waitcnt lgkmcnt(0)")
    A("    s_nop 1")
    for db in range(8):
        r = VF + db*4
        A(f"    v_mfma_f32_16x16x32_bf16 v[{O+4*db}:{O+4*db+3}], v[{r}:{r+3}], v[{P}:{P+3}], v[{O+4*db}:{O+4*db+3}]")
    A("    s_nop 15")
    A(f"    s_add_u32 s{S_T}, s{S_T}, 1")
    A(f"    s_cmp_lt_u32 s{S_T}, 32")
    A(f"    s_cbranch_scc1 {label}_t")
    A(f"    v_mov_b32 v{rT1}, v{rL}")
    A("    s_nop 1")
    A(f"    v_permlane32_swap_b32 v{rL}, v{rT1}")
    A("    s_nop 1")
    A(f"    v_add_f32 v{rL}, v{rL}, v{rT1}")
    A(f"    v_mov_b32 v{rT1}, v{rL}")
    A("    s_nop 1")
    A(f"    v_permlane16_swap_b32 v{rL}, v{rT1}")
    A("    s_nop 1")
    A(f"    v_add_f32 v{rL}, v{rL}, v{rT1}")
    A(f"    v_rcp_f32 v{rL}, v{rL}")
    A("    s_nop 0")
    for i in range(32):
        A(f"    v_mul_f32 v{O+i}, v{O+i}, v{rL}")
    for u in range(4):
        e = E + 4*u
        a = O + 8*u
        A(f"    v_cvt_pk_bf16_f32 v{e}, v{a}, v{a+1}")
        A(f"    v_cvt_pk_bf16_f32 v{e+1}, v{a+2}, v{a+3}")
        A(f"    v_cvt_pk_bf16_f32 v{e+2}, v{a+4}, v{a+5}")
        A(f"    v_cvt_pk_bf16_f32 v{e+3}, v{a+6}, v{a+7}")
    A("    s_nop 1")
    for u in range(4):
        e = E + 4*u
        A(f"    v_permlane32_swap_b32 v{e}, v{e+2}")
        A(f"    v_permlane32_swap_b32 v{e+1}, v{e+3}")
    A("    s_nop 1")
    for u in range(4):
        e = E + 4*u
        A(f"    v_permlane16_swap_b32 v{e}, v{e+2}")
        A(f"    v_permlane16_swap_b32 v{e+1}, v{e+3}")
    A("    s_nop 1")
    for u in range(4):
        e = E + 4*u
        A(f"    buffer_store_dwordx4 v[{e}:{e+3}], v{rG}, s[{SRD_O}:{SRD_O+3}], s34 offen offset:{u*64}")
    A("    s_waitcnt vmcnt(0)")
    A(f"    s_add_u32 s{S_J}, s{S_J}, 1")
    A(f"    s_cmp_lt_u32 s{S_J}, 9")
    A(f"    s_cbranch_scc1 {label}_j")
    return "\n".join(L) + "\n"

if __name__ == "__main__":
    import sys
    s = header() + setup_scalar() + "    s_branch L_fb\n" + emit_fallback() + "L_end:\n    s_endpgm\n" + footer()
    open(sys.argv[1] if len(sys.argv) > 1 else "safe.s", "w").write(s)
```

```python
import numpy as np, warnings
warnings.filterwarnings("ignore")
from scipy.optimize import linear_sum_assignment

PER = 288
LDSQ = (3, 5, 7)

def P0(U): return 16 * (U - 1)

def build_ops(cfg):
    LAT = cfg['lat']
    ops = []
    for t in range(2):
        for j in range(9):
            U = 9*t + j
            p = P0(U)
            for i in range(8):
                hi = p + (31 if i < 4 else 35)
                ops.append(dict(kind='add', id=('add', t, j, i), lo=p + 8 + 2*i, hi=hi, cls='valu'))
            for c in range(4):
                ops.append(dict(kind='cvt', id=('cvt', t, j, c), lo=p + 10 + 4*c, hi=p + 22, cls='valu'))
        T = 144*t
        for kb in range(2):
            for dc in range(4):
                rel = T + 112 + 4*kb + dc
                ops.append(dict(kind='kread', id=('kread', t, kb, dc), lo=rel, hi=rel + 16 - LAT, cls='lds'))
        for db in range(8):
            for h in range(2):
                rel = T + 136 + db
                ops.append(dict(kind='vread', id=('vread', t, db, h), lo=rel, hi=rel + 16 - LAT, cls='lds'))
        prev = {3: (9*t - 9 + 7), 5: 9*t + 3, 7: 9*t + 5}
        for j in LDSQ:
            need = P0(9*t + j)
            for dc in range(4):
                lo = max(P0(prev[j]) + 4 + dc, need - cfg.get('qwin', 26))
                ops.append(dict(kind='qread', id=('qread', t, j, dc), lo=lo, hi=need + dc - LAT, cls='lds'))
    for (name, lo, hi) in cfg['toggles']:
        ops.append(dict(kind='toggle', id=('toggle', name), lo=lo, hi=hi, cls='valu'))
    return ops

def assign(cfg):
    ops = build_ops(cfg)
    dma_gaps = set(g % PER for g in cfg['dma_gaps'])
    slots = []
    for g in range(PER):
        if g in dma_gaps: continue
        if g % 2 == 0:
            slots += [(g, 0.0, False), (g, 0.0, False), (g, cfg['c_third'], False), (g, 2*cfg['c_third']+1, False)]
        else:
            slots += [(g, cfg['c_odd'], True)]
    n, m = len(ops), len(slots)
    BIG = 1e6
    C = np.full((n, m), BIG)
    for a, op in enumerate(ops):
        lo, hi = op['lo'], op['hi']
        for b, (g, c, ldsonly) in enumerate(slots):
            if ldsonly and op['cls'] != 'lds': continue
            k = -((g - lo) // PER)
            G = g + k*PER
            if G < lo: G += PER
            if G > hi: continue
            pref = 0.0
            if op['cls'] == 'lds': pref = cfg.get('eps_lds', 0.01) * (G - lo)
            elif op['kind'] == 'cvt': pref = 0.002 * (G - lo)
            else: pref = 0.001 * (G - lo)
            C[a, b] = c + pref
    r, cidx = linear_sum_assignment(C)
    res = {}
    tot = 0
    for a, b in zip(r, cidx):
        assert C[a, b] < BIG, ("infeasible", ops[a])
        g, c, _ = slots[b]
        lo = ops[a]['lo']
        k = -((g - lo) // PER); G = g + k*PER
        if G < lo: G += PER
        res[ops[a]['id']] = G
        tot += c
    return res, tot, ops

if __name__ == "__main__":
    cfg = dict(lat=7, dma_gaps=[36,44,68,76, 144+36,144+44,144+68,144+76], c_third=4.0, c_odd=4.0,
               toggles=[('K', 20, 100), ('V', 30, 125)])
    res, tot, ops = assign(cfg)
    print("total overflow cost", tot)
    bygap = {}
    for k, G in res.items(): bygap.setdefault(G % PER, []).append(k)
    for g in range(PER):
        print(g, g % 16, bygap.get(g, []))
```

```python
import sys
from common import *
from fallback import emit_fallback
import sched

V_K, V_V, V_Q, V_D = 0, 1, 2, 3
V_C = 4
V_L = 8
V_T0, V_T1, V_G = 17, 18, 19
SA = (20, 24); SB = (28, 32); PB = (36, 40)
KF = 44
VF = 76
LB = 108
O8 = 124
QB = 156
LDSQ = sched.LDSQ
QREGS = {}
_n = 0
for _j in range(9):
    if _j not in LDSQ:
        QREGS[_j] = QB + 16*_n; _n += 1
Q_TMP = {3: LB, 5: O8, 7: O8 + 16}
Q_LDS_OFF = {3: 0, 5: 512, 7: TILE}
NT = 32

def vr(a, n=1): return [('v', a+i) for i in range(n)]
def ar(a, n=1): return [('a', a+i) for i in range(n)]
def vtxt(a, n): return f"v[{a}:{a+n-1}]" if n > 1 else f"v{a}"

class I:
    def __init__(s, text, kind, w=(), r=(), tag=None, needs=(), trans=False):
        s.text, s.kind, s.w, s.r, s.tag, s.needs, s.trans = text, kind, list(w), list(r), tag, list(needs), trans
    def __repr__(s): return s.text

def o_regs(j, db):
    return ('v', O8 + 4*db) if j == 8 else ('a', 32*j + 4*db)
def rtxt(kind, a, n): return f"{kind}[{a}:{a+n-1}]"

def q_src(t, j, dc):
    if j in QREGS: return QREGS[j] + 4*dc
    if t == 0: return Q_TMP[j] + 4*dc
    return LB + 4*dc

def mfma_qk(t, j, kb, dc):
    U = 9*t + j
    d = (SA if kb == 0 else SB)[U & 1]
    k = KF + (kb*4 + dc)*4
    q = q_src(t, j, dc)
    if dc == 0:
        if U == 0: c, cr = "0", []
        else: c, cr = rtxt('v', V_C, 4), vr(V_C, 4)
    else: c, cr = rtxt('v', d, 4), vr(d, 4)
    needs = [('K', t, kb, dc)]
    if j in LDSQ and t > 0: needs.append(('Q', t, j, dc))
    return I(f"v_mfma_f32_16x16x32_bf16 {rtxt('v',d,4)}, {rtxt('v',k,4)}, {rtxt('v',q,4)}, {c}", 'mfma',
             w=vr(d,4), r=vr(k,4)+vr(q,4)+cr, needs=needs)

def mfma_pv(t, j, db):
    U = 9*t + j
    kind, o = o_regs(j, db)
    regs = [(kind, o+i) for i in range(4)]
    p = PB[U & 1]
    v = VF + 4*db
    zero = (t == 0 and j < 8)
    c = "0" if zero else rtxt(kind, o, 4)
    return I(f"v_mfma_f32_16x16x32_bf16 {rtxt(kind,o,4)}, {rtxt('v',v,4)}, {rtxt('v',p,4)}, {c}", 'mfma',
             w=regs, r=vr(v,4)+vr(p,4)+([] if zero else regs), needs=[('V', t, db, 0), ('V', t, db, 1)])

def s_reg(U, i): return (SA[U & 1] + i) if i < 4 else (SB[U & 1] + i - 4)

def op_exp(t, j, i):
    r = s_reg(9*t+j, i)
    return I(f"v_exp_f32 v{r}, v{r}", 'valu', w=vr(r), r=vr(r), trans=True)
def op_add(t, j, i, first):
    r = s_reg(9*t+j, i)
    if first:
        return I(f"v_mov_b32 v{V_L+j}, v{r}", 'valu', w=vr(V_L+j), r=vr(r))
    return I(f"v_add_f32 v{V_L+j}, v{V_L+j}, v{r}", 'valu', w=vr(V_L+j), r=vr(r)+vr(V_L+j))
def op_cvt(t, j, c):
    U = 9*t+j
    a, b = s_reg(U, 2*c), s_reg(U, 2*c+1)
    d = PB[U & 1] + c
    return I(f"v_cvt_pk_bf16_f32 v{d}, v{a}, v{b}", 'valu', w=vr(d), r=vr(a)+vr(b))

def slot_imm(t):
    return 0 if (t & 1) else TILE
def op_kread(t, kb, dc):
    r = KF + (kb*4+dc)*4
    return I(f"ds_read_b128 {rtxt('v',r,4)}, v{V_K} offset:{slot_imm(t) + k_off(kb,dc)}", 'lds', w=vr(r,4), r=vr(V_K), tag=('K', t, kb, dc))
def op_vread(t, db, h):
    r = VF + 4*db + 2*h
    return I(f"ds_read_b64_tr_b16 {rtxt('v',r,2)}, v{V_V} offset:{slot_imm(t) + v_off(db,h)}", 'lds', w=vr(r,2), r=vr(V_V), tag=('V', t, db, h))
def op_qread(t, j, dc):
    r = LB + 4*dc
    return I(f"ds_read_b128 {rtxt('v',r,4)}, v{V_Q} offset:{Q_LDS_OFF[j] + k_off(0,dc)}", 'lds', w=vr(r,4), r=vr(V_Q), tag=('Q', t, j, dc))

LDFLAG = "nt"
STFLAG = "sc1"
def dma_ops(t_target, which):
    t = t_target - 3
    srd = SRD_K if which < 2 else SRD_V
    hh = which & 1
    ring = KRING if which < 2 else VRING
    if t & 1: sx, base = S_XB, TILE
    else: sx, base = S_XA, 0
    imm = ring + base + hh*HALF - hh*128
    m0 = I(f"s_add_u32 m0, s{sx}, {imm}", 'salu', w=['m0', 'scc'], r=[('s', sx)])
    off = f" offset:{hh*128}" if hh else ""
    d = I(f"buffer_load_dwordx4 v{V_D}, s[{srd}:{srd+3}], s{S_G} offen{off} {LDFLAG} lds", 'vmem', r=vr(V_D)+['m0', ('s', S_G)], tag=('T', t_target, which))
    return m0, d

def valu(text, w=(), r=(), trans=False): return I(text, 'valu', w=w, r=r, trans=trans)
def nop(n): return I(f"s_nop {n}", 'nop')

def convert_q(base):
    L = []
    for r in range(16):
        x = base + r
        L += [valu(f"v_lshlrev_b32 v{V_T0}, 16, v{x}", w=vr(V_T0), r=vr(x)),
              valu(f"v_and_b32 v{V_T1}, s{S_MASK}, v{x}", w=vr(V_T1), r=vr(x)),
              valu(f"v_mul_f32 v{V_T0}, s{S_C}, v{V_T0}", w=vr(V_T0), r=vr(V_T0)),
              valu(f"v_mul_f32 v{V_T1}, s{S_C}, v{V_T1}", w=vr(V_T1), r=vr(V_T1)),
              valu(f"v_cvt_pk_bf16_f32 v{x}, v{V_T0}, v{V_T1}", w=vr(x), r=vr(V_T0)+vr(V_T1))]
    return L

def q_ready_section(j):
    base = QREGS[j] if j in QREGS else Q_TMP[j]
    L = convert_q(base)
    L[0].needs = [('QL', j, 3)]
    if j in LDSQ:
        for dc in range(4):
            L.append(I(f"ds_write_b128 v{V_Q}, {rtxt('v', base+4*dc, 4)} offset:{Q_LDS_OFF[j] + k_off(0,dc)}", 'lds', r=vr(V_Q)+vr(base+4*dc,4), tag=('QW', j, dc)))
    L += [nop(1)]
    return L

def epilogue_section(j):
    T = QREGS[0]
    E = QREGS[1]
    l = V_L + j
    L = []
    L += [valu(f"v_mov_b32 v{V_T0}, v{l}", w=vr(V_T0), r=vr(l)), nop(1),
          valu(f"v_permlane32_swap_b32 v{l}, v{V_T0}", w=vr(l)+vr(V_T0), r=vr(l)+vr(V_T0)), nop(0),
          valu(f"v_add_f32 v{l}, v{l}, v{V_T0}", w=vr(l), r=vr(l)+vr(V_T0)),
          valu(f"v_mov_b32 v{V_T0}, v{l}", w=vr(V_T0), r=vr(l)), nop(1),
          valu(f"v_permlane16_swap_b32 v{l}, v{V_T0}", w=vr(l)+vr(V_T0), r=vr(l)+vr(V_T0)), nop(0),
          valu(f"v_add_f32 v{l}, v{l}, v{V_T0}", w=vr(l), r=vr(l)+vr(V_T0)),
          valu(f"v_rcp_f32 v{V_T1}, v{l}", w=vr(V_T1), r=vr(l), trans=True),
          valu(f"v_cmp_nle_f32 vcc, s{S_LO}, v{l}", w=['vcc'], r=vr(l)),
          valu(f"v_cmp_nge_f32 s[34:35], s{S_HI}, v{l}", w=[('s',34),('s',35)], r=vr(l))]
    first = True
    for u in range(4):
        e = E + 4*u
        src = []
        for x in range(8):
            kind, o = o_regs(j, 2*u + x//4)
            o += x % 4
            if kind == 'a':
                tt = T + (u & 1)*8 + x
                L.append(valu(f"v_accvgpr_read_b32 v{tt}, a{o}", w=vr(tt), r=ar(o)))
                src.append((tt, tt))
            else:
                src.append((T + (u & 1)*8 + x, o))
        if first:
            L.append(I(f"s_or_b64 s[{S_FAIL}:{S_FAIL+1}], s[{S_FAIL}:{S_FAIL+1}], vcc", 'salu', w=[('s',S_FAIL),('s',S_FAIL+1),'scc'], r=['vcc']))
            L.append(I(f"s_or_b64 s[{S_FAIL}:{S_FAIL+1}], s[{S_FAIL}:{S_FAIL+1}], s[34:35]", 'salu', w=[('s',S_FAIL),('s',S_FAIL+1),'scc'], r=[('s',34),('s',35)]))
            first = False
        for (d, s_) in src:
            L.append(valu(f"v_mul_f32 v{d}, v{s_}, v{V_T1}", w=vr(d), r=vr(s_)+vr(V_T1)))
        for x in range(4):
            a = src[2*x][0]; b = src[2*x+1][0]
            L.append(valu(f"v_cvt_pk_bf16_f32 v{e+x}, v{a}, v{b}", w=vr(e+x), r=vr(a)+vr(b)))
    L.append(nop(0))
    for u in range(4):
        e = E + 4*u
        L.append(valu(f"v_permlane32_swap_b32 v{e}, v{e+2}", w=vr(e)+vr(e+2), r=vr(e)+vr(e+2), ))
        L.append(valu(f"v_permlane32_swap_b32 v{e+1}, v{e+3}", w=vr(e+1)+vr(e+3), r=vr(e+1)+vr(e+3)))
    L.append(nop(0))
    for u in range(4):
        e = E + 4*u
        L.append(valu(f"v_permlane16_swap_b32 v{e}, v{e+2}", w=vr(e)+vr(e+2), r=vr(e)+vr(e+2)))
        L.append(valu(f"v_permlane16_swap_b32 v{e+1}, v{e+3}", w=vr(e+1)+vr(e+3), r=vr(e+1)+vr(e+3)))
    L.append(I(f"s_add_u32 s36, s{S_QROW}, {j*4096}", 'salu', w=[('s',36),'scc'], r=[('s',S_QROW)]))
    for u in range(4):
        e = E + 4*u
        L.append(I(f"buffer_store_dwordx4 {rtxt('v',e,4)}, v{V_G}, s[{SRD_O}:{SRD_O+3}], s36 offen offset:{u*64} {STFLAG}", 'vmem', r=vr(e,4)+vr(V_G)+[('s',36)], tag=('ST', j, u)))
    return L

class Gap:
    def __init__(s):
        s.pre, s.mfma, s.front, s.lds, s.dma, s.valu, s.exp, s.post = [], None, [], [], None, [], None, []

def build(cfg):
    res, tot, ops = sched.assign(cfg)
    print(f"; overflow cost per 2 tiles: {tot}", file=sys.stderr)
    gaps = {}
    def G(g):
        if g not in gaps: gaps[g] = Gap()
        return gaps[g]
    GSTART = -9
    NU = 9*NT
    lfirst = {}
    for U in range(NU):
        t, j = divmod(U, 9)
        p = sched.P0(U)
        tp, base = t & 1, (t - (t & 1))*144
        if U > 0:
            for kb in range(2):
                for dc in range(4):
                    G(p + 4*kb + dc).mfma = mfma_qk(t, j, kb, dc)
        for db in range(8):
            G(p + 24 + db).mfma = mfma_pv(t, j, db)
        for i in range(8):
            G(p + 7 + 2*i).exp = op_exp(t, j, i)
    def inst(idt, tile):
        return res[idt] + (tile - idt[1])*144
    for t in range(NT):
        tp = t & 1
        for j in range(9):
            adds = sorted(range(8), key=lambda i: (inst(('add', tp, j, i), t), i))
            for n, i in enumerate(adds):
                G(inst(('add', tp, j, i), t)).valu.append((0, op_add(t, j, i, first=False)))
            for c in range(4):
                G(inst(('cvt', tp, j, c), t)).valu.append((1, op_cvt(t, j, c)))
        if t + 1 < NT:
            for kb in range(2):
                for dc in range(4):
                    G(inst(('kread', tp, kb, dc), t)).lds.append(op_kread(t+1, kb, dc))
            for db in range(8):
                for h in range(2):
                    G(inst(('vread', tp, db, h), t)).lds.append(op_vread(t+1, db, h))
        if t > 0:
            for j in LDSQ:
                for dc in range(4):
                    G(inst(('qread', tp, j, dc), t)).lds.append(op_qread(t, j, dc))
        if tp == 0 and t + 1 < NT:
            for name, reg in (('K', V_K), ('V', V_V)):
                g = res[('toggle', name)] + t*144
                G(g).valu.append((2, valu(f"v_add_u32 v{reg}, s{S_DK}, v{reg}", w=vr(reg), r=vr(reg))))
        if t < NT - 1:
            for which, g0 in enumerate(cfg['dma_tile']):
                m0, d = dma_ops(t + 3, which)
                g = 144*t + g0
                G(g).dma = d
                G(g-1).front.append(m0)
            G(144*t + cfg['dma_tile'][-1] + 1).front.append(I(f"s_add_u32 s{S_G}, s{S_G}, 8192", 'salu', w=[('s',S_G),'scc'], r=[('s',S_G)]))
        if tp == 0 and t + 1 < NT:
            g = 144*t + 144
            G(g + 3).front.append(I(f"s_add_u32 s{S_XA}, s{S_XA}, s{S_DK}", 'salu', w=[('s',S_XA),'scc']))
            G(g + 5).front.append(I(f"s_sub_u32 s{S_XB}, s{S_XB}, s{S_DK}", 'salu', w=[('s',S_XB),'scc']))
            G(g + 7).front.append(I(f"s_sub_u32 s{S_DK}, 0, s{S_DK}", 'salu', w=[('s',S_DK),'scc']))
        gb = 144*t + cfg['bar_gap']
        if t + 1 < NT:
            need = [('T', t+1, 3)]
        else:
            need = [('T', NT + 1, 3)]
        G(gb).front.append(I("s_barrier", 'barrier', needs=need))
    for j in range(1, 9):
        G(sched.P0(j)).pre += q_ready_section(j)
    G(sched.P0(8)).pre += [valu(f"v_mov_b32 v{O8+i}, 0", w=vr(O8+i)) for i in range(32)] + [nop(1)]
    for j in range(8):
        G(144*(NT-1) + 16*j + 20).pre += epilogue_section(j)
    last = max(gaps)
    G(last).post += [nop(7), nop(1)] + epilogue_section(8)
    return gaps, GSTART

def linearize(gaps, gstart, pre_lds, pre_vm):
    lds_seq = list(pre_lds); vm_seq = list(pre_vm)
    lds_done = len(lds_seq) - 1
    vm_done = -1
    out = {}
    def need_idx(needs, seq, kinds):
        x = -1
        for n in needs:
            if n[0] in kinds:
                if n in seq: x = max(x, len(seq) - 1 - seq[::-1].index(n))
                else: raise Exception(f"needed tag {n} not issued yet")
        return x
    LK = ('K', 'V', 'Q', 'QW'); VK = ('T', 'QL', 'ST')
    def wait_for(needs):
        nonlocal lds_done, vm_done
        parts = []
        x = need_idx(needs, vm_seq, VK)
        if x > vm_done:
            n = len(vm_seq) - 1 - x
            assert n <= 63
            parts.append(f"vmcnt({n})"); vm_done = x
        x = need_idx(needs, lds_seq, LK)
        if x > lds_done:
            n = min(len(lds_seq) - 1 - x, 15)
            parts.append(f"lgkmcnt({n})"); lds_done = len(lds_seq) - 1 - n
        if parts: return [I("s_waitcnt " + " ".join(parts), 'wait')]
        return []
    def push(L, ins):
        L.append(ins)
        if ins.kind == 'lds': lds_seq.append(ins.tag)
        if ins.kind == 'vmem': vm_seq.append(ins.tag)
    gmax = max(gaps)
    for g in range(gstart, gmax + 1):
        gp = gaps.get(g, Gap())
        L = []
        for ins in gp.pre:
            L += wait_for(ins.needs); push(L, ins)
        if gp.mfma is not None:
            L += wait_for(gp.mfma.needs)
            push(L, gp.mfma)
        else:
            push(L, nop(1))
        nxt = gaps.get(g + 1)
        needs = []
        if nxt is not None and nxt.mfma is not None and not nxt.pre: needs += nxt.mfma.needs
        if nxt is not None:
            for f in nxt.front:
                if f.kind == 'barrier': needs += f.needs
        L += wait_for(needs)
        for f in gp.front:
            L += wait_for(f.needs); push(L, f)
        for x in gp.lds: push(L, x)
        if gp.dma is not None: push(L, gp.dma)
        for _, x in sorted(gp.valu, key=lambda z: z[0]): push(L, x)
        if gp.exp is not None: push(L, gp.exp)
        for ins in gp.post:
            L += wait_for(ins.needs); push(L, ins)
        out[g] = L
    return out

def check_hazards(seq, name=""):
    probs = []
    n = len(seq)
    def states(i, j):
        s = 0
        for k in range(i+1, j):
            t = seq[k].text
            s += (int(t.split()[1]) + 1) if t.startswith("s_nop") else 1
        return s
    lastw = {}
    lastCread = {}
    for i, ins in enumerate(seq):
        isperm = ins.text.startswith("v_permlane")
        for r in ins.r:
            if r in lastw:
                k, kind, tr = lastw[r]
                d = states(k, i) if i - k < 40 else 99
                if kind == 'valu' and ins.kind == 'mfma' and d < 2: probs.append((i, f"VALU->MFMA {r} d={d}: {seq[k].text} | {ins.text}"))
                if kind == 'mfma' and ins.kind != 'mfma' and d < 8: probs.append((i, f"MFMA->read {r} d={d}: {seq[k].text} | {ins.text}"))
                if kind == 'mfma' and ins.kind == 'mfma' and d < 8:
                    if not (r in ins.w and set(seq[k].w) == set(ins.w)): probs.append((i, f"MFMA->MFMA AB {r} d={d}: {seq[k].text} | {ins.text}"))
                if tr and ins.kind == 'valu' and d < 1: probs.append((i, f"trans->VALU {r}: {seq[k].text} | {ins.text}"))
                if kind == 'valu' and isperm and d < 2: probs.append((i, f"VALU->permlane {r} d={d}: {seq[k].text} | {ins.text}"))
                if r == 'm0' and ins.kind == 'vmem' and d < 1: probs.append((i, f"m0->dma"))
                if kind == 'valu' and r == 'vcc' and ins.kind == 'salu' and d < 1: probs.append((i, "vcc->salu"))
        for r in ins.w:
            if r in lastw:
                k, kind, tr = lastw[r]
                d = states(k, i) if i - k < 40 else 99
                if kind == 'mfma' and ins.kind in ('valu', 'lds') and d < 8: probs.append((i, f"MFMA->WAW {r} d={d}: {seq[k].text} | {ins.text}"))
            if ins.kind == 'valu' and r in lastCread and i - lastCread[r] < 40 and states(lastCread[r], i) < 3:
                probs.append((i, f"MFMA C WAR {r}: {seq[lastCread[r]].text} | {ins.text}"))
        if ins.kind == 'valu':
            for k in range(max(0, i-3), i):
                if seq[k].text.startswith("buffer_store") and set(seq[k].r) & set(ins.w) and states(k, i) < 2:
                    probs.append((i, f"store WAR: {seq[k].text} | {ins.text}"))
        if ins.kind == 'mfma':
            c = ins.text.split(",")[-1].strip()
            if c != "0":
                for r in ins.r:
                    if r in ins.w or (c.startswith("v[%d" % V_C) and r in vr(V_C, 4)): lastCread[r] = i
        for r in ins.w:
            lastw[r] = (i, ins.kind, ins.trans)
    return probs

def prologue():
    L = []
    A = L.append
    txt = setup_scalar()
    txt += lane_addr(4, V_V, V_D, V_G, 5, 6, 7)
    t = f"""
    s_mul_i32 s34, s{S_W}, {QW}
    s_add_u32 s34, s34, {QREG}
    v_add_u32 v{V_Q}, s34, v4
    v_add_u32 v{V_K}, {2*TILE}, v4
    v_add_u32 v{V_V}, {VRING + 2*TILE}, v{V_V}
    s_mul_i32 s35, s{S_W}, {CH}
    s_add_u32 s{S_XA}, s35, {2*TILE}
    s_mov_b32 s{S_XB}, s35
    s_mov_b32 s{S_DK}, {(-2*TILE) & 0xffffffff:#x}
    s_lshl_b32 s{S_G}, s{S_W}, 9
    s_mov_b32 s{S_FAIL}, 0
    s_mov_b32 s{S_FAIL+1}, 0
    s_mov_b32 s{S_LO}, {f32bits(2.0**-30):#x}
    s_mov_b32 s{S_HI}, {f32bits(2.0**30):#x}
"""
    txt += t
    vm = []
    def tile_dma(tt):
        slot = (tt + 3) % 4
        for which in range(4):
            srd = SRD_K if which < 2 else SRD_V
            hh = which & 1
            ring = KRING if which < 2 else VRING
            imm = ring + slot*TILE + hh*HALF - hh*128
            A(I(f"s_add_u32 m0, s35, {imm}", 'salu', w=['m0','scc']))
            A(I("s_nop 0", 'nop'))
            off = f" offset:{hh*128}" if hh else ""
            A(I(f"buffer_load_dwordx4 v{V_D}, s[{srd}:{srd+3}], s{S_G} offen{off} {LDFLAG} lds", 'vmem', r=['m0'], tag=('T', tt, which)))
            vm.append(('T', tt, which))
        A(I(f"s_add_u32 s{S_G}, s{S_G}, 8192", 'salu', w=['scc']))
    def q_load(j):
        base = QREGS[j] if j in QREGS else Q_TMP[j]
        A(I(f"s_add_u32 s36, s{S_QROW}, {j*4096}", 'salu', w=['scc']))
        for dc in range(4):
            A(I(f"buffer_load_dwordx4 {rtxt('v', base+4*dc, 4)}, v{V_G}, s[{SRD_Q}:{SRD_Q+3}], s36 offen offset:{dc*64} {LDFLAG}", 'vmem', w=vr(base+4*dc,4), tag=('QL', j, dc)))
            vm.append(('QL', j, dc))
    tile_dma(0)
    for j in range(8): q_load(j)
    tile_dma(1)
    q_load(8)
    tile_dma(2)
    nvm = len(vm)
    A(I(f"s_waitcnt vmcnt({nvm - 4})", 'wait'))
    A(I("s_barrier", 'barrier'))
    lds = []
    for kb in range(2):
        for dc in range(4):
            x = op_kread(0, kb, dc); A(x); lds.append(x.tag)
    A(I("s_waitcnt lgkmcnt(0)", 'wait'))
    for db in range(8):
        for h in range(2):
            x = op_vread(0, db, h); A(x); lds.append(x.tag)
        if db == 3: A(I("s_waitcnt lgkmcnt(0)", 'wait'))
    A(I(f"s_waitcnt vmcnt({nvm - 8})", 'wait'))
    for x in convert_q(QREGS[0]): A(x)
    A(nop(1))
    for kb in range(2):
        for dc in range(4):
            A(mfma_qk(0, 0, kb, dc))
    A(I("s_waitcnt lgkmcnt(0)", 'wait'))
    A(nop(7))
    a, b = SA[0], SB[0]
    A(valu(f"v_max3_f32 v{V_T0}, v{a}, v{a+1}, v{a+2}", w=vr(V_T0), r=vr(a,3)))
    A(valu(f"v_max3_f32 v{V_T1}, v{a+3}, v{b}, v{b+1}", w=vr(V_T1), r=vr(a+3)+vr(b,2)))
    A(valu(f"v_max3_f32 v{V_T0}, v{V_T0}, v{b+2}, v{b+3}", w=vr(V_T0), r=vr(V_T0)+vr(b+2,2)))
    A(valu(f"v_max_f32 v{V_T0}, v{V_T0}, v{V_T1}", w=vr(V_T0), r=vr(V_T0)+vr(V_T1)))
    A(valu(f"v_mov_b32 v{V_T1}, v{V_T0}", w=vr(V_T1), r=vr(V_T0)))
    A(nop(1))
    A(valu(f"v_permlane32_swap_b32 v{V_T0}, v{V_T1}", w=vr(V_T0)+vr(V_T1), r=vr(V_T0)+vr(V_T1)))
    A(nop(0))
    A(valu(f"v_max_f32 v{V_T0}, v{V_T0}, v{V_T1}", w=vr(V_T0), r=vr(V_T0)+vr(V_T1)))
    A(valu(f"v_mov_b32 v{V_T1}, v{V_T0}", w=vr(V_T1), r=vr(V_T0)))
    A(nop(1))
    A(valu(f"v_permlane16_swap_b32 v{V_T0}, v{V_T1}", w=vr(V_T0)+vr(V_T1), r=vr(V_T0)+vr(V_T1)))
    A(nop(0))
    A(valu(f"v_max_f32 v{V_T0}, v{V_T0}, v{V_T1}", w=vr(V_T0), r=vr(V_T0)+vr(V_T1)))
    for i in range(4):
        A(valu(f"v_sub_f32 v{V_C+i}, 0, v{V_T0}", w=vr(V_C+i), r=vr(V_T0)))
    for i in range(4):
        A(valu(f"v_sub_f32 v{a+i}, v{a+i}, v{V_T0}", w=vr(a+i), r=vr(a+i)+vr(V_T0)))
        A(valu(f"v_sub_f32 v{b+i}, v{b+i}, v{V_T0}", w=vr(b+i), r=vr(b+i)+vr(V_T0)))
    for j in range(9):
        A(valu(f"v_mov_b32 v{V_L+j}, 0", w=vr(V_L+j)))
    return txt, L, lds, vm

def generate(cfg):
    global LDFLAG, STFLAG
    LDFLAG = cfg.get('ldflag', 'nt'); STFLAG = cfg.get('stflag', 'sc1')
    gaps, gstart = build(cfg)
    ptxt, pins, lds, vm = prologue()
    out = linearize(gaps, gstart, lds, vm)
    gs = sorted(out)
    seq = list(pins)
    for g in gs: seq += out[g]
    probs = check_hazards(seq)
    for p in probs[:40]: print("HAZARD", p, file=sys.stderr)
    assert not probs, f"{len(probs)} hazards"
    LOOP0, PER, NIT = 128, 288, 15
    def text(g0, g1): return [x.text for g in range(g0, g1) for x in out.get(g, [])]
    body = text(LOOP0, LOOP0 + PER)
    for it in range(1, NIT):
        b2 = text(LOOP0 + it*PER, LOOP0 + (it+1)*PER)
        if b2 != body:
            for n, (x, y) in enumerate(zip(body, b2)):
                if x != y: print("DIFF it", it, n, x, "|", y, file=sys.stderr)
            raise Exception(f"loop body differs at iteration {it}")
    s = header() + ptxt
    s += "".join("    " + x.text + "\n" for x in pins)
    s += "".join("    " + x + "\n" for x in text(gstart, LOOP0))
    s += f"    s_mov_b32 s{S_IT}, {NIT}\n"
    if cfg.get('align', True): s += "    .p2align 6\n"
    s += "L_loop:\n"
    lines = []
    for g in range(LOOP0, LOOP0 + PER):
        T = [x.text for x in out.get(g, [])]
        if g == LOOP0 + PER - 3:
            T.insert(1, f"s_sub_u32 s{S_IT}, s{S_IT}, 1")
        if g == LOOP0 + PER - 1:
            T.insert(1, f"s_cmp_lg_u32 s{S_IT}, 0")
            assert not any(x.startswith("s_add") or x.startswith("s_sub") for x in T[2:])
            T.append("s_cbranch_scc1 L_loop")
        lines += T
    s += "".join("    " + x + "\n" for x in lines)
    s += "".join("    " + x + "\n" for x in text(LOOP0 + NIT*PER, max(gs) + 1))
    s += f"    s_cmp_lg_u64 s[{S_FAIL}:{S_FAIL+1}], 0\n    s_cbranch_scc1 L_fb\n    s_endpgm\n"
    s += emit_fallback()
    s += "L_end:\n    s_endpgm\n" + footer()
    ninstr = len(lines)
    print(f"; loop body: {ninstr} instrs", file=sys.stderr)
    return s

DEFAULT = dict(lat=7, dma_tile=[36, 44, 68, 76], c_third=4.0, c_odd=4.0,
               toggles=[('K', 20, 100), ('V', 30, 125)], bar_gap=110)
DEFAULT['dma_gaps'] = DEFAULT['dma_tile'] + [144 + g for g in DEFAULT['dma_tile']]

if __name__ == "__main__":
    cfg = dict(DEFAULT)
    s = generate(cfg)
    open(sys.argv[1] if len(sys.argv) > 1 else "fast.s", "w").write(s)
```

```python
from mbgen import gen
def pro_load():
    s = "    v_lshlrev_b32 v8, 4, v0\n    s_lshl_b32 s35, s2, 14\n    v_add_u32 v8, s35, v8\n"
    for i in range(16):
        s += f"    buffer_load_dwordx4 v[{64+4*i}:{67+4*i}], v8, s[16:19], 0 offen offset:{(i%4)*1024}\n"
        if i%4==3: s += "    v_add_u32 v8, 4096, v8\n"
    for i in range(256):
        s += f"    v_accvgpr_write_b32 a{i}, 0\n"
    for i in range(128,256):
        s += f"    v_mov_b32 v{i}, -1.0\n"
    s += "    v_and_b32 v9, 63, v0\n    v_lshlrev_b32 v9, 4, v9\n    v_and_b32 v10, 63, v0\n  v_lshlrev_b32 v10, 3, v10\n"
    return s

def m32(acc, a, b):
    return f"    v_mfma_f32_32x32x16_bf16 a[{acc}:{acc+15}], v[{a}:{a+3}], v[{b}:{b+3}], a[{acc}:{acc+15}]\n"
def m16(acc, a, b):
    return f"    v_mfma_f32_16x16x32_bf16 a[{acc}:{acc+3}], v[{a}:{a+3}], v[{b}:{b+3}], a[{acc}:{acc+3}]\n"

def body32(fill):
    s = ""
    for i in range(16):
        s += m32((i%4)*16 + 64*(i//8), 64+4*(i%8), 96+4*((i*3)%8))
        s += fill(i)
    return s
def body16(fill):
    s = ""
    for i in range(32):
        s += m16((i%16)*4, 64+4*(i%8), 96+4*((i*3)%8))
        s += fill(i)
    return s

def F(spec):
    def fill(i):
        s = ""
        for j, kind in enumerate(spec(i)):
            r = 128 + ((i*5+j) % 32)
            r2 = 160 + ((i*5+j) % 32)
            r3 = 192 + ((i*5+j) % 16)*4
            if kind == 'e': s += f"    v_exp_f32 v{r}, v{r2}\n"
            elif kind == 'a': s += f"    v_add_f32 v{r}, v{r2}, v{r}\n"
            elif kind == 'A': s += f"    v_add_f32 v{20+(j%4)}, v{r2}, v{20+(j%4)}\n"
            elif kind == 'c': s += f"    v_cvt_pk_bf16_f32 v{r}, v{r2}, v{r2+1}\n"
            elif kind == 'm': s += f"    v_max3_f32 v{r}, v{r2}, v{r2+1}, v{r}\n"
            elif kind == 'f': s += f"    v_fma_f32 v{r}, v{r2}, s3, v{r}\n"
            elif kind == 'd': s += f"    ds_read_b128 v[{r3}:{r3+3}], v9 offset:{(i*1024)%16384}\n"
            elif kind == 't': s += f"    ds_read_b64_tr_b16 v[{r3}:{r3+1}], v10 offset:{(i*512)%16384}\n"
            elif kind == 'p': s += f"    v_pk_add_f32 v[{r&~1}:{(r&~1)+1}], v[{r2&~1}:{(r2&~1)+1}], v[{r&~1}:{(r&~1)+1}]\n"
            elif kind == 'o': s += f"    v_dot2_f32_bf16 v{r}, v{r2}, v{r2+1}, v{r}\n"
            elif kind == 'n': s += f"    s_nop 0\n"
            elif kind == 'w': s += f"    s_waitcnt lgkmcnt(4)\n"
        return s
    return fill

cases = {}
cases['m32_bare'] = body32(F(lambda i: []))
cases['m16_bare'] = body16(F(lambda i: []))
for name, sp in {
  'e': ['e'], 'ea': ['e','a'], 'eac': ['e','a','c'], 'eacd': ['e','a','c','d'], 'eaaa': ['e','a','a','a'], 'eaaaa': ['e','a','a','a','a'],
  'eaaaaa': ['e','a','a','a','a','a'], 'ee': ['e','e'], 'eea':['e','e','a'], 'eeaa':['e','e','a','a'], 'eee':['e','e','e'],
  'aaaaa':['a']*5, 'aaaaaa':['a']*6, 'a7':['a']*7, 'ep':['e','p'], 'eo':['e','o'], 'pp':['p','p'], 'oo':['o','o'], 'eadt':['e','a','d','t'], 'eatt':['e','a','t','t'],
  'eacdw':['e','a','c','d','w'],
  }.items():
    cases['m32_'+name] = body32(F(lambda i, sp=sp: sp))
cases['m32_real1'] = body32(F(lambda i: ['e','a','c','d'] if i%2==0 else ['e','a','t']))
cases['m32_real2'] = body32(F(lambda i: ['e','a','c','d','m'] if i%2==0 else ['e','a','t','f']))
for name, sp in {'e':lambda i:['e'] if i%2==0 else [], 'a':lambda i:['a'], 'aa':lambda i:['a','a'], 'e_a':lambda i:['e'] if i%2==0 else ['a'],
   'e_ac':lambda i:['e'] if i%2==0 else ['a','c'], 'e_aa':lambda i:['e'] if i%2==0 else ['a','a'], 'ea_a':lambda i:['e','a'] if i%2==0 else ['a'],
   'e_c':lambda i:['e'] if i%2==0 else (['c'] if i%4==1 else []), 'e_cd':lambda i:['e'] if i%2==0 else (['c'] if i%4==1 else ['d']),
   'e_a_cd':lambda i:['e'] if i%2==0 else (['a','c'] if i%4==1 else ['a','d']),
   }.items():
    cases['m16_'+name] = body16(F(sp))
if __name__ == '__main__':
    import sys
    names=[]
    for n, b in cases.items():
        iters = 144
        open(f"k_{n}.s","w").write(gen(b, pro=pro_load(), iters=iters, lds=65536))
        names.append(f"k_{n}.s")
    print(" ".join(names))
```

```python
KNAME = "mb_kernel"
def gen(body, pro="", epi="", iters=100, grid=256, block=256, lds=0, nv=512, acc=256, unroll_note=""):
    waves = block // 64
    return f"""; @launch grid=({grid},1,1) block=({block},1,1) lds={lds}
.amdgcn_target "amdgcn-amd-amdhsa--gfx950"
.text
.globl {KNAME}
.p2align 8
.type {KNAME},@function
{KNAME}:
    s_load_dwordx4 s[4:7], s[0:1], 0
    s_load_dwordx4 s[8:11], s[0:1], 16
    s_load_dwordx2 s[12:13], s[0:1], 40
    s_waitcnt lgkmcnt(0)
    s_cmp_ge_u32 s2, {grid}
    s_cbranch_scc1 L_done
    s_mov_b32 s16, s4
    s_mov_b32 s17, s5
    s_mov_b32 s18, 37748736
    s_mov_b32 s19, 0x00020000
    s_mov_b32 s20, s6
    s_mov_b32 s21, s7
    s_mov_b32 s22, 67108864
    s_mov_b32 s23, 0x00020000
    s_mov_b32 s24, s8
    s_mov_b32 s25, s9
    s_mov_b32 s26, 67108864
    s_mov_b32 s27, 0x00020000
    s_mov_b32 s28, s10
    s_mov_b32 s29, s11
    s_mov_b32 s30, 37748736
    s_mov_b32 s31, 0x00020000
    v_lshrrev_b32 v1, 6, v0
    s_nop 1
    v_readfirstlane_b32 s3, v1
    s_nop 3
{pro}
    s_waitcnt vmcnt(0) lgkmcnt(0)
    s_barrier
    s_memtime s[40:41]
    s_memrealtime s[42:43]
    s_waitcnt lgkmcnt(0)
    s_mov_b32 s33, {iters}
    .p2align 6
L_loop:
{body}
    s_sub_u32 s33, s33, 1
    s_cmp_lg_u32 s33, 0
    s_cbranch_scc1 L_loop
    s_nop 15
    s_nop 15
    s_waitcnt vmcnt(0) lgkmcnt(0)
    s_memtime s[44:45]
    s_memrealtime s[46:47]
    s_waitcnt lgkmcnt(0)
{epi}
    s_sub_u32 s44, s44, s40
    s_sub_u32 s46, s46, s42
    s_mul_i32 s34, s2, {waves}
    s_add_u32 s34, s34, s3
    s_lshl_b32 s34, s34, 4
    v_mov_b32 v2, s44
    v_mov_b32 v3, s46
    v_mov_b32 v4, s40
    v_mov_b32 v5, s42
    v_mov_b32 v6, s34
    v_and_b32 v7, 63, v0
    v_cmp_eq_u32 vcc, 0, v7
    s_and_saveexec_b64 s[36:37], vcc
    s_cbranch_execz L_done
    buffer_store_dwordx4 v[2:5], v6, s[28:31], 0 offen
    s_waitcnt vmcnt(0)
L_done:
    s_endpgm
.section .rodata,"a"
.p2align 6
.amdhsa_kernel {KNAME}
  .amdhsa_next_free_vgpr {nv}
  .amdhsa_next_free_sgpr 96
  .amdhsa_accum_offset {acc}
  .amdhsa_group_segment_fixed_size 0
  .amdhsa_kernarg_size 48
  .amdhsa_user_sgpr_count 2
  .amdhsa_user_sgpr_kernarg_segment_ptr 1
  .amdhsa_system_sgpr_workgroup_id_x 1
  .amdhsa_float_denorm_mode_32 3
.end_amdhsa_kernel
"""
```

```python
from mbgen import gen
from g1 import pro_load
def pro():
    s = pro_load()
    for i in range(240, 244): s += f"    v_mov_b32 v{i}, 0x3f803f80\n"
    for i in range(192, 240): s += f"    v_mov_b32 v{i}, 0\n"
    return s
def body(mode):
    s = ""
    for u in range(4):
        seq = []
        for k in range(8):
            d = 192 + (u%2)*8 + (k//4)*4
            a = 64 + 4*k; b = 96 + 4*((k + u) % 8)
            c = f"v[{d}:{d+3}]"
            seq.append(f"    v_mfma_f32_16x16x32_bf16 v[{d}:{d+3}], v[{a}:{a+3}], v[{b}:{b+3}], {c}\n")
        pb = 96 + 4*((u*3) % 8)
        for k in range(8):
            o = u*32 + k*4; a = 64 + 4*((k*3 + u) % 8)
            seq.append(f"    v_mfma_f32_16x16x32_bf16 a[{o}:{o+3}], v[{a}:{a+3}], v[{pb}:{pb+3}], a[{o}:{o+3}]\n")
        if mode == 'ones':
            seq.append(f"    v_mfma_f32_16x16x32_bf16 v[{208+4*u}:{211+4*u}], v[240:243], v[{pb}:{pb+3}], v[{208+4*u}:{211+4*u}]\n")
        for g, m in enumerate(seq):
            s += m
            n = u*16 + g
            r = 128 + (n % 32); r2 = 160 + (n % 32)
            if g >= 16: continue
            if g % 2 == 1: s += f"    v_exp_f32 v{r}, v{r2}\n"
            else:
                if mode == 'adds': s += f"    v_add_f32 v{20+u}, v{20+u}, v{r2}\n"
                if g % 4 == 2: s += f"    v_cvt_pk_bf16_f32 v{r}, v{r2}, v{r2+1}\n"
    return s
names = []
for m in ('adds', 'ones', 'none'):
    n = f"k20_{m}.s"; names.append(n)
    open(n, "w").write(gen(body(m), pro=pro(), iters=72, lds=65536))
print(" ".join(names))
```
